```python
import torch

def _softmax(x, axis=-1):
    return torch.softmax(x, dim=axis)

def _gelu(x):
    return torch.nn.functional.gelu(x, approximate='tanh')

def _silu(x):
    return torch.nn.functional.silu(x)

def _sigmoid(x):
    return torch.sigmoid(x)

def _layernorm(x, axis=-1, eps=1e-05):
    m = x.mean(dim=axis, keepdim=True)
    v = x.var(dim=axis, keepdim=True, unbiased=False)
    return (x - m) / torch.sqrt(v + eps)

def _scatter_add(tgt, idx, src, axis=0):
    return tgt.clone().index_add_(axis, idx, src)

def _segment_sum(src, seg, n):
    out = torch.zeros((n,) + src.shape[1:], dtype=src.dtype)
    return out.index_add_(0, seg, src)

def _pad(x, pw):
    flat = tuple((v for pair in reversed(pw) for v in pair))
    return torch.nn.functional.pad(x, flat)
kernel_name = 'standalone__window_attn_twins__vision'

def setup_inputs():

    _w = lambda a: (lambda t: t.to(torch.bfloat16) if t.is_floating_point() else t)(torch.as_tensor(a))
    H = W = 224 // 8 * 8
    C = 96
    return {'x': _w((lambda *s: torch.randn(*s, dtype=torch.bfloat16) * 0.8)(1, H, W, C)), 'wq': _w((lambda *s: torch.randn(*s, dtype=torch.bfloat16) * 0.8)(C, C)), 'wkv': _w((lambda *s: torch.randn(*s, dtype=torch.bfloat16) * 0.8)(C, 2 * C)), 'wo': _w((lambda *s: torch.randn(*s, dtype=torch.bfloat16) * 0.05)(C, C))}

def reference(x, wq, wkv, wo):
    B, H, W, C = x.shape
    win = 8
    nh, nw = (H // win, W // win)
    xs = x.reshape(B, nh, win, nw, win, C).mean(axis=(2, 4)).reshape(B, nh * nw, C)
    q = x.reshape(B, H * W, C) @ wq
    kv = xs @ wkv
    k, v = (kv[..., :C].clone(), kv[..., C:].clone())
    scale = C ** (-0.5)
    p = _softmax(torch.einsum('bqc,bkc->bqk', q, k) * scale, axis=-1)
    o = torch.einsum('bqk,bkc->bqc', p, v) @ wo
    return o.reshape(B, H, W, C)
```

```python
import sys, math

HEADER = open('standalone__window_attn_twins__vision.s.ref').read().split('; Override launch')[0]

L = []
def A(s):
    for line in s.split('\n'):
        L.append(line)

XBYTES = 9633792
WS_KV = 25*12288

def vr(b, n): return f'v[{b}:{b+n-1}]'

def gen_prep():
    A('.p2align 8')
    A('.globl prep_kernel\n.type prep_kernel,@function\nprep_kernel:')
    A('s_cmp_ge_u32 s2, 196\ns_cbranch_scc1 Lp_end')
    A('s_load_dwordx8 s[4:11], s[0:1], 0')
    A('s_load_dwordx2 s[12:13], s[0:1], 48')
    A('v_lshrrev_b32 v1, 6, v0')
    A('v_and_b32 v0, 63, v0')
    A('v_readfirstlane_b32 s14, v1')
    A('s_waitcnt lgkmcnt(0)')
    def srd(d, b, n):
        A(f's_mov_b32 s{d}, s{b}\ns_and_b32 s{d+1}, s{b+1}, 0xffff\ns_mov_b32 s{d+2}, {n}\ns_mov_b32 s{d+3}, 0x20000')
    srd(16, 4, XBYTES)
    srd(20, 6, 18432)
    srd(24, 8, 36864)
    srd(28, 10, 18432)
    srd(32, 12, WS_KV)
    A('s_cmp_ge_u32 s14, 4\ns_cbranch_scc1 Lp_mfma')
    A('s_lshl_b32 s36, s2, 2\ns_add_u32 s36, s36, s14')
    A('s_mul_i32 s37, s36, 9363\ns_lshr_b32 s37, s37, 18')
    A('s_mul_i32 s38, s37, 28\ns_sub_u32 s38, s36, s38')
    A('s_mul_i32 s37, s37, 344064\ns_mul_i32 s38, s38, 1536\ns_add_u32 s37, s37, s38')
    A('v_mul_u32_u24 v1, 12, v0')
    for r in range(8):
        for h in range(2):
            d = 16 + 4*(2*r+h)
            A(f'buffer_load_dwordx3 {vr(d,3)}, v1, s[16:19], s37 offen offset:{768*h}')
        if r < 7: A('s_add_u32 s37, s37, 43008')
    for i in range(16):
        d = 16 + 4*i
        A(f's_waitcnt vmcnt({15-i})')
        for k in range(3):
            if i == 0:
                A(f'v_lshlrev_b32 v{2+2*k}, 16, v{d+k}')
                A(f'v_and_b32 v{3+2*k}, 0xffff0000, v{d+k}')
            else:
                A(f'v_lshlrev_b32 v{8+2*k}, 16, v{d+k}')
                A(f'v_and_b32 v{9+2*k}, 0xffff0000, v{d+k}')
        if i > 0:
            for k in range(6):
                A(f'v_add_f32 v{2+k}, v{2+k}, v{8+k}')
    for sw in ('v_permlane16_swap_b32', 'v_permlane32_swap_b32'):
        for k in range(6): A(f'v_mov_b32 v{8+k}, v{2+k}')
        A('s_nop 1')
        for k in range(6): A(f'{sw} v{2+k}, v{8+k}')
        A('s_nop 1')
        for k in range(6): A(f'v_add_f32 v{2+k}, v{2+k}, v{8+k}')
    for k in range(6): A(f'v_mul_f32 v{2+k}, 0x3c800000, v{2+k}')
    for k in range(3): A(f'v_cvt_pk_bf16_f32 v{8+k}, v{2+2*k}, v{3+2*k}')
    A('s_mul_i32 s38, s14, 192')
    A('v_add_u32 v1, s38, v1')
    A('s_mov_b64 exec, 0xffff')
    A('ds_write2_b32 v1, v8, v9 offset0:0 offset1:1')
    A('ds_write_b32 v1, v10 offset:8')
    A('s_waitcnt lgkmcnt(0)')
    A('s_barrier')
    A('s_endpgm')
    A('Lp_mfma:')
    A('s_sub_u32 s14, s14, 4')
    A('s_mul_i32 s36, s14, 18432\ns_add_u32 s36, s36, 4096')
    A('v_mul_u32_u24 v1, 43, v0\nv_lshrrev_b32 v1, 8, v1')
    A('v_mul_u32_u24 v2, 6, v1\nv_sub_u32 v2, v0, v2')
    A('v_lshlrev_b32 v2, 4, v2')
    A('s_mul_i32 s37, s14, 96')
    A('v_mul_u32_u24 v3, 384, v1\nv_add3_u32 v3, v3, v2, s37')
    A('s_and_b32 s38, s14, 1\ns_mul_i32 s38, s38, 96')
    A('v_mul_u32_u24 v4, 192, v1\nv_add3_u32 v4, v4, v2, s38')
    A('v_and_b32 v5, 15, v0\nv_lshrrev_b32 v6, 4, v0')
    A('s_mov_b32 exec_hi, 0xffff')
    A('s_mov_b32 s39, s36\ns_mov_b32 s40, 0')
    for n in range(12):
        A('s_mov_b32 m0, s39')
        A('s_add_u32 s39, s39, 768')
        A('buffer_load_dwordx4 v3, s[24:27], s40 offen lds')
        A('s_add_u32 s40, s40, 3072')
    A('s_cmp_lt_u32 s14, 2\ns_cbranch_scc1 Lp_wq')
    A('s_mov_b32 s40, 0')
    for n in range(12):
        A('s_mov_b32 m0, s39')
        A('s_add_u32 s39, s39, 768')
        A('buffer_load_dwordx4 v4, s[28:31], s40 offen lds')
        A('s_add_u32 s40, s40, 1536')
    A('s_mov_b64 exec, -1')
    A('s_branch Lp_wdone')
    A('Lp_wq:')
    A('s_mov_b64 exec, -1')
    A('v_mul_u32_u24 v7, 192, v5\nv_lshl_add_u32 v7, v6, 4, v7')
    A('s_mul_i32 s40, s14, 9216')
    for ct in range(3):
        for ks in range(3):
            A(f'buffer_load_dwordx4 {vr(64+4*(3*ct+ks),4)}, v7, s[20:23], s40 offen offset:{64*ks}')
        A('s_add_u32 s40, s40, 3072')
    A('Lp_wdone:')
    A('v_lshrrev_b32 v8, 2, v5\nv_lshl_add_u32 v8, v6, 3, v8')
    A('v_mul_u32_u24 v8, 96, v8')
    A('v_and_b32 v9, 3, v0')
    A('v_lshl_add_u32 v8, v9, 3, v8')
    A('v_add_u32 v8, s36, v8')
    A('s_waitcnt vmcnt(0)')
    for nt in range(3):
        for ks in range(3):
            for half in range(2):
                d = 24 + 4*(3*nt+ks) + 2*half
                A(f'ds_read_b64_tr_b16 {vr(d,2)}, v8 offset:{(32*ks+4*half)*96 + nt*32}')
    A('s_cmp_lt_u32 s14, 2\ns_cbranch_scc1 Lp_notr')
    for nt in range(3):
        for ks in range(3):
            for half in range(2):
                d = 64 + 4*(3*nt+ks) + 2*half
                A(f'ds_read_b64_tr_b16 {vr(d,2)}, v8 offset:{9216 + (32*ks+4*half)*96 + nt*32}')
    A('Lp_notr:')
    A('v_mul_u32_u24 v10, 192, v9\nv_lshl_add_u32 v10, v6, 4, v10')
    A('v_mul_u32_u24 v11, 384, v9\nv_lshl_add_u32 v11, v6, 4, v11')
    A('s_lshr_b32 s37, s14, 1\ns_mul_i32 s37, s37, 192\ns_add_u32 s37, s37, 1024')
    A('v_add_u32 v11, s37, v11')
    A('v_mul_u32_u24 v12, 384, v9\nv_lshl_add_u32 v12, v6, 3, v12')
    A('s_mul_i32 s37, s14, 96\ns_add_u32 s37, s37, 1024')
    A('v_add_u32 v12, s37, v12')
    A('s_waitcnt lgkmcnt(0)')
    A('s_barrier')
    for ks in range(3):
        A(f'ds_read_b128 {vr(100+4*ks,4)}, v10 offset:{64*ks}')
    for ks in range(3):
        A(f's_waitcnt lgkmcnt({2-ks})')
        for nt in range(3):
            c = '0' if ks == 0 else vr(112+4*nt,4)
            A(f'v_mfma_f32_16x16x32_bf16 {vr(112+4*nt,4)}, {vr(24+4*(3*nt+ks),4)}, {vr(100+4*ks,4)}, {c}')
    A('s_nop 7')
    for nt in range(3):
        A(f'v_cvt_pk_bf16_f32 v{100+2*nt}, v{112+4*nt}, v{113+4*nt}')
        A(f'v_cvt_pk_bf16_f32 v{101+2*nt}, v{114+4*nt}, v{115+4*nt}')
    A('s_mov_b32 s42, 0x000f000f\ns_mov_b32 s43, 0x000f000f')
    A('s_mov_b64 exec, s[42:43]')
    for nt in range(3):
        A(f'ds_write_b64 v12, {vr(100+2*nt,2)} offset:{32*nt}')
    A('s_mov_b64 exec, -1')
    A('s_waitcnt lgkmcnt(0)')
    A('s_barrier')
    for ks in range(3):
        A(f'ds_read_b128 {vr(100+4*ks,4)}, v11 offset:{64*ks}')
    A('s_lshr_b32 s37, s2, 3\ns_mul_i32 s37, s37, 12288')
    A('s_cmp_lt_u32 s14, 2\ns_cbranch_scc0 Lp_v')
    for ks in range(3):
        A(f's_waitcnt lgkmcnt({2-ks})')
        for ct in range(3):
            c = '0' if ks == 0 else vr(112+4*ct,4)
            A(f'v_mfma_f32_16x16x32_bf16 {vr(112+4*ct,4)}, {vr(64+4*(3*ct+ks),4)}, {vr(100+4*ks,4)}, {c}')
    A('v_lshrrev_b32 v13, 1, v6\nv_lshlrev_b32 v13, 9, v13')
    A('v_lshl_add_u32 v13, v5, 4, v13')
    A('v_and_b32 v14, 1, v6\nv_lshl_add_u32 v13, v14, 3, v13')
    A('s_and_b32 s38, s2, 7\ns_lshl_b32 s38, s38, 6\ns_add_u32 s37, s37, s38')
    A('s_mul_i32 s38, s14, 3072\ns_add_u32 s37, s37, s38')
    import struct
    cs = struct.unpack('<I', struct.pack('<f', 96**-0.5 * math.log2(math.e)))[0]
    A(f's_mov_b32 s38, {cs:#x}')
    A('s_nop 4')
    for k in range(12): A(f'v_mul_f32 v{112+k}, s38, v{112+k}')
    for ct in range(3):
        A(f'v_cvt_pk_bf16_f32 v{100+2*ct}, v{112+4*ct}, v{113+4*ct}')
        A(f'v_cvt_pk_bf16_f32 v{101+2*ct}, v{114+4*ct}, v{115+4*ct}')
    A('s_mov_b64 exec, s[42:43]')
    for ct in range(3):
        A(f'buffer_store_dwordx2 {vr(100+2*ct,2)}, v13, s[32:35], s37 offen offset:{1024*ct}')
    A('s_endpgm')
    A('Lp_v:')
    for ks in range(3):
        A(f's_waitcnt lgkmcnt({2-ks})')
        for nt in range(3):
            c = '0' if ks == 0 else vr(112+4*nt,4)
            A(f'v_mfma_f32_16x16x32_bf16 {vr(112+4*nt,4)}, {vr(100+4*ks,4)}, {vr(64+4*(3*nt+ks),4)}, {c}')
    A('v_lshlrev_b32 v13, 4, v5')
    A('s_add_u32 s37, s37, 6144')
    A('s_bfe_u32 s38, s2, 0x10002\ns_mul_i32 s38, s38, 3072\ns_add_u32 s37, s37, s38')
    A('s_and_b32 s38, s2, 1\ns_lshl_b32 s38, s38, 9\ns_add_u32 s37, s37, s38')
    A('s_bfe_u32 s38, s2, 0x10001\ns_lshl_b32 s38, s38, 3\ns_add_u32 s37, s37, s38')
    A('s_and_b32 s38, s14, 1\ns_mul_i32 s39, s38, 1280\ns_add_u32 s37, s37, s39')
    A('s_mul_i32 s39, s38, 512\ns_add_u32 s39, s39, 256\ns_add_u32 s39, s39, s37')
    A('s_nop 2')
    for nt in range(3):
        A(f'v_cvt_pk_bf16_f32 v{100+2*nt}, v{112+4*nt}, v{113+4*nt}')
        A(f'v_cvt_pk_bf16_f32 v{101+2*nt}, v{114+4*nt}, v{115+4*nt}')
    A('s_mov_b64 exec, 0xffff')
    A(f'buffer_store_dwordx2 {vr(100,2)}, v13, s[32:35], s37 offen')
    A(f'buffer_store_dwordx2 {vr(102,2)}, v13, s[32:35], s39 offen')
    A(f'buffer_store_dwordx2 {vr(104,2)}, v13, s[32:35], s37 offen offset:1024')
    A('Lp_end:')
    A('s_endpgm')

Q0, O0, NM, S0, F0 = 8, 32, 80, 96, 128
SLOT = 24576
HBASE = 6*SLOT
NWG = 262

def Sb(par): return S0 + 16*par
def Fs(slot): return F0 + 4*slot

def mf(d, a, b, c):
    A(f'v_mfma_f32_32x32x16_bf16 {vr(d,16)}, {vr(a,4)}, {vr(b,4)}, {c}')

def softmax_ops(sb, tps=(0,1)):
    early = {}
    late = []
    for tp in tps:
        b = sb + 8*tp
        ops = []
        ops.append(f'v_exp_f32 v{b+0}, v{b+0}')
        ops.append(f'v_exp_f32 v{b+1}, v{b+1}')
        ops.append(f'v_exp_f32 v{b+2}, v{b+2}')
        ops.append(f'v_add_f32 v5, v5, v{b+0}')
        ops.append(f'v_exp_f32 v{b+3}, v{b+3}')
        ops.append(f'v_add_f32 v5, v5, v{b+1}')
        ops.append(f'v_exp_f32 v{b+4}, v{b+4}')
        ops.append(f'v_cvt_pk_bf16_f32 v{b+0}, v{b+0}, v{b+1}')
        ops.append(f'v_exp_f32 v{b+5}, v{b+5}')
        ops.append(f'v_add_f32 v5, v5, v{b+2}')
        ops.append(f'v_exp_f32 v{b+6}, v{b+6}')
        ops.append(f'v_add_f32 v5, v5, v{b+3}')
        ops.append(f'v_exp_f32 v{b+7}, v{b+7}')
        ops.append(f'v_cvt_pk_bf16_f32 v{b+1}, v{b+2}, v{b+3}')
        ops.append(f'v_cvt_pk_bf16_f32 v{b+2}, v{b+4}, v{b+5}')
        ops.append(f'v_cvt_pk_bf16_f32 v{b+3}, v{b+6}, v{b+7}')
        early[tp] = ops
        for k in range(4, 8): late.append(f'v_add_f32 v5, v5, v{b+k}')
    return early, late

def kaddr(kk): return kk*1024
def vaddr(tp, nn): return 6144 + tp*3072 + nn*1024

def body(odd, tail=False):
    sb = Sb(odd); sn = Sb(1-odd)
    base = 4 if odd else 0
    if not odd:
        st = {0: ('v2', 0), 1: ('v2', SLOT), 2: ('v3', 0)}
    else:
        st = {0: ('v2', SLOT), 1: ('v3', 0), 2: ('v3', SLOT)}
    def read_for(j):
        slot = (base + j) % 8
        if j < 12:
            k = j - 6; reg, off = st[0]; off += vaddr(k//3, k%3)
        elif j < 18:
            reg, off = st[2]; off += kaddr(j-12)
        else:
            k = j - 18; reg, off = st[1]; off += vaddr(k//3, k%3)
        return f'ds_read_b128 {vr(Fs(slot),4)}, {reg} offset:{off}'
    early, late = softmax_ops(sb)
    if not tail:
        A('s_waitcnt vmcnt(4)')
        A('s_barrier')
        lab = 'o' if odd else 'e'
        A(f's_cmp_ge_u32 s30, 7\ns_cbranch_scc1 La_nodma_{lab}')
        A('s_mov_b32 m0, s31')
        A('s_add_u32 s31, s31, %d' % SLOT)
        A('buffer_load_dwordx4 v4, s[12:15], s32 offen lds')
        A('buffer_load_dwordx4 v4, s[12:15], s32 offen offset:1024 lds')
        A('s_add_u32 s32, s32, %d' % SLOT)
        A('s_cmp_ge_u32 s31, s33\ns_cselect_b32 s34, %d, 0\ns_sub_u32 s31, s31, s34' % (6*SLOT))
        A(f's_branch La_dmadone_{lab}')
        A(f'La_nodma_{lab}:')
        A('s_waitcnt vmcnt(0)')
        A(f'La_dmadone_{lab}:')
        gaps = [[] for _ in range(12)]
        seq = early[0] + early[1]
        plan = [3,4,4,4,4,4,4,4,1]
        idx = 0
        for g, n in enumerate(plan):
            gaps[g] = seq[idx:idx+n]; idx += n
        assert idx == 32
        gaps[8] += late[0:2]
        gaps[9] = late[2:4]; gaps[10] = late[4:6]; gaps[11] = late[6:8]
        for j in range(12):
            slot = (base + j) % 8
            A('s_waitcnt lgkmcnt(7)')
            if j < 6:
                c = vr(NM,16) if j == 0 else vr(sn,16)
                mf(sn, Fs(slot), Q0+4*j, c)
            else:
                k = j - 6; tp, nn = k//3, k%3
                mf(O0+16*nn, Fs(slot), sb+8*tp, vr(O0+16*nn,16))
            if odd and j == 4:
                pass
            A(read_for(j+8))
            for o in gaps[j]: A(o)
    else:
        for j in range(8, 12): A(read_for(j))
        for o in early[0]: A(o)
        A('s_waitcnt lgkmcnt(3)')
        A('s_nop 0')
        e1 = early[1]
        for j in range(6, 12):
            slot = (base + j) % 8
            k = j - 6; tp, nn = k//3, k%3
            if j == 9:
                A('s_waitcnt lgkmcnt(0)')
                A('s_nop 0')
            mf(O0+16*nn, Fs(slot), sb+8*tp, vr(O0+16*nn,16))
            if j < 9:
                n = [6,5,5][j-6]
                for o in e1[:n]: A(o)
                e1 = e1[n:]
            else:
                n = [3,3,2][j-9]
                for o in late[:n]: A(o)
                late = late[n:]

def first_max(sb, nregs):
    A(f'v_max3_f32 v6, v{sb}, v{sb+1}, v{sb+2}')
    k = 3
    while k + 1 < nregs:
        A(f'v_max3_f32 v6, v6, v{sb+k}, v{sb+k+1}'); k += 2
    if k < nregs:
        A(f'v_max_f32 v6, v6, v{sb+k}')
    A('v_mov_b32 v7, v6')
    A('s_nop 1')
    A('v_permlane32_swap_b32 v6, v7')
    A('s_nop 1')
    A('v_max_f32 v6, v6, v7')
    for k in range(16): A(f'v_sub_f32 v{NM+k}, 0, v6')
    for k in range(nregs): A(f'v_sub_f32 v{sb+k}, v{sb+k}, v6')

def gen_attn():
    A('.p2align 8')
    A('.globl attn_kernel\n.type attn_kernel,@function\nattn_kernel:')
    A(f's_cmp_ge_u32 s2, {NWG}\ns_cbranch_scc1 La_end')
    A('s_load_dwordx2 s[4:5], s[0:1], 0')
    A('s_load_dwordx2 s[6:7], s[0:1], 32')
    A('s_load_dwordx2 s[20:21], s[0:1], 48')
    A('v_lshrrev_b32 v1, 6, v0')
    A('v_and_b32 v0, 63, v0')
    A('v_readfirstlane_b32 s24, v1')
    A('v_lshlrev_b32 v4, 4, v0')
    A('s_cmp_ge_u32 s24, 6\ns_cselect_b32 s25, 1, 0')
    A('s_mul_i32 s26, s25, 6\ns_sub_u32 s26, s24, s26')
    A('s_mul_i32 s27, s2, 6\ns_add_u32 s27, s27, s26\ns_mul_i32 s27, s27, 6144')
    A('v_and_b32 v160, 31, v0\nv_mul_u32_u24 v160, 192, v160')
    A('v_lshrrev_b32 v161, 5, v0\nv_lshl_add_u32 v160, v161, 4, v160')
    A('s_waitcnt lgkmcnt(0)')
    def srd(d, b, n):
        A(f's_mov_b32 s{d}, s{b}\ns_and_b32 s{d+1}, s{b+1}, 0xffff\ns_mov_b32 s{d+2}, {n}\ns_mov_b32 s{d+3}, 0x20000')
    srd(8, 4, XBYTES)
    srd(12, 20, WS_KV)
    srd(16, 6, XBYTES)
    A('s_lshl_b32 s28, s24, 10')
    A(f's_add_u32 s29, s28, {HBASE}\ns_mov_b32 m0, s29')
    A(f's_add_u32 s29, s28, {24*12288}')
    A('buffer_load_dwordx4 v4, s[12:15], s29 offen lds')
    A('s_lshl_b32 s31, s24, 11')
    A('s_mov_b32 s32, s31')
    A(f's_add_u32 s33, s31, {6*SLOT}')
    def dma_stage():
        A('s_mov_b32 m0, s31')
        A('s_add_u32 s31, s31, %d' % SLOT)
        A('buffer_load_dwordx4 v4, s[12:15], s32 offen lds')
        A('buffer_load_dwordx4 v4, s[12:15], s32 offen offset:1024 lds')
        A('s_add_u32 s32, s32, %d' % SLOT)
    dma_stage()
    for kk in range(6):
        A(f'buffer_load_dwordx4 {vr(Q0+4*kk,4)}, v160, s[8:11], s27 offen offset:{32*kk}')
    for s in range(1, 5): dma_stage()
    for k in range(48): A(f'v_mov_b32 v{O0+k}, 0')
    A('v_mov_b32 v5, 0')
    A('s_mul_i32 s29, s25, 12288')
    A('v_add_u32 v1, s29, v4')
    A('v_mov_b32 v2, v1')
    A(f'v_add_u32 v3, {2*SLOT}, v1')
    A(f's_mov_b32 s35, {4*SLOT}')
    A('s_mov_b32 s30, 0')
    A('s_waitcnt vmcnt(8)')
    A('s_barrier')
    A('s_cmp_eq_u32 s25, 1\ns_cbranch_scc1 La_pathN')
    A(f'v_add_u32 v7, {HBASE}, v4')
    for kk in range(6): A(f'ds_read_b128 {vr(Fs(kk),4)}, v7 offset:{kaddr(kk)}')
    for kk in range(6):
        A(f's_waitcnt lgkmcnt({5-kk})')
        mf(Sb(1), Fs(kk), Q0+4*kk, '0' if kk == 0 else vr(Sb(1),16))
    for nn in range(3): A(f'ds_read_b128 {vr(Fs(nn),4)}, v7 offset:{vaddr(0,nn)}')
    for kk in range(5): A(f'ds_read_b128 {vr(Fs(3+kk),4)}, v2 offset:{kaddr(kk)}')
    A('s_nop 7')
    first_max(Sb(1), 8)
    early, late = softmax_ops(Sb(1), (0,))
    for o in early[0]: A(o)
    for o in late: A(o)
    A('s_waitcnt lgkmcnt(5)')
    for nn in range(3):
        mf(O0+16*nn, Fs(nn), Sb(1), vr(O0+16*nn,16))
    A(f'ds_read_b128 {vr(Fs(0),4)}, v2 offset:{kaddr(5)}')
    for kk in range(6):
        A(f's_waitcnt lgkmcnt({5-kk})')
        mf(Sb(0), Fs((3+kk)%8), Q0+4*kk, vr(NM,16) if kk == 0 else vr(Sb(0),16))
    A('s_waitcnt vmcnt(6)')
    A('s_barrier')
    A('s_branch La_pre')
    A('La_pathN:')
    for kk in range(6): A(f'ds_read_b128 {vr(Fs(kk),4)}, v2 offset:{kaddr(kk)}')
    for kk in range(6):
        A(f's_waitcnt lgkmcnt({5-kk})')
        mf(Sb(0), Fs(kk), Q0+4*kk, '0' if kk == 0 else vr(Sb(0),16))
    A('s_nop 7\ns_nop 3')
    first_max(Sb(0), 16)
    A('s_waitcnt vmcnt(6)')
    A('s_barrier')
    A('La_pre:')
    for kk in range(6): A(f'ds_read_b128 {vr(Fs(kk),4)}, v2 offset:{SLOT+kaddr(kk)}')
    for k in range(2): A(f'ds_read_b128 {vr(Fs(6+k),4)}, v2 offset:{vaddr(0,k)}')
    A('s_nop 3')
    A('.p2align 6')
    A('La_loop:')
    body(0)
    A('s_cmp_eq_u32 s30, 10\ns_cbranch_scc1 La_tail')
    A('s_add_u32 s30, s30, 1')
    body(1)
    A('s_add_u32 s30, s30, 1')
    A('v_mov_b32 v2, v3')
    A('v_add_u32 v3, s35, v1')
    A(f's_add_u32 s35, s35, {2*SLOT}\ns_cmp_ge_u32 s35, {6*SLOT}\ns_cselect_b32 s35, 0, s35')
    A('s_branch La_loop')
    A('La_tail:')
    body(1, tail=True)
    A('v_mov_b32 v7, v5')
    A('s_nop 1')
    A('v_permlane32_swap_b32 v5, v7')
    A('s_nop 1')
    A('v_add_f32 v7, v5, v7')
    A('s_mul_i32 s28, s26, 13312')
    A('s_mul_i32 s29, s25, 6656\ns_add_u32 s29, s29, s28')
    A('s_xor_b32 s34, s25, 1\ns_mul_i32 s34, s34, 6656\ns_add_u32 s34, s34, s28')
    A('v_add_u32 v2, s29, v4')
    A('v_add_u32 v3, s34, v4')
    A('v_lshrrev_b32 v161, 1, v4')
    A('v_add_u32 v162, s29, v161')
    A('v_add_u32 v163, s34, v161')
    A('ds_write_b64 v162, v[6:7] offset:6144')
    A('s_nop 7')
    A('s_cmp_eq_u32 s25, 1\ns_cbranch_scc1 La_ep1')
    for k in range(6): A(f'ds_write_b128 v2, {vr(O0+24+4*k,4)} offset:{1024*k}')
    A('s_branch La_ep2')
    A('La_ep1:')
    for k in range(6): A(f'ds_write_b128 v2, {vr(O0+4*k,4)} offset:{1024*k}')
    A('s_nop 1')
    for k in range(24): A(f'v_mov_b32 v{O0+k}, v{O0+24+k}')
    A('La_ep2:')
    A('s_waitcnt lgkmcnt(0)')
    A('s_barrier')
    A('ds_read_b64 v[164:165], v163 offset:6144')
    for k in range(6): A(f'ds_read_b128 {vr(S0+4*k,4)}, v3 offset:{1024*k}')
    A('s_waitcnt lgkmcnt(6)')
    A('v_max_f32 v166, v6, v164')
    A('v_sub_f32 v6, v6, v166\nv_sub_f32 v164, v164, v166')
    A('v_exp_f32 v6, v6\nv_exp_f32 v164, v164')
    A('s_nop 0')
    A('v_mul_f32 v7, v7, v6\nv_fmac_f32 v7, v165, v164')
    A('v_rcp_f32 v7, v7')
    A('s_nop 0')
    A('v_mul_f32 v6, v6, v7\nv_mul_f32 v164, v164, v7')
    for k in range(24): A(f'v_mul_f32 v{O0+k}, v{O0+k}, v6')
    A('s_mul_i32 s28, s25, 96\ns_add_u32 s27, s27, s28')
    for pr in range(3):
        A(f's_waitcnt lgkmcnt({4-2*pr})')
        for k in range(8): A(f'v_fmac_f32 v{O0+8*pr+k}, v{S0+8*pr+k}, v164')
        w = F0 + 4*pr
        for k in range(4): A(f'v_cvt_pk_bf16_f32 v{w+k}, v{O0+8*pr+2*k}, v{O0+8*pr+2*k+1}')
        A('s_nop 1')
        A(f'v_permlane32_swap_b32 v{w}, v{w+2}')
        A(f'v_permlane32_swap_b32 v{w+1}, v{w+3}')
        A(f'buffer_store_dwordx4 {vr(w,4)}, v160, s[16:19], s27 offen offset:{32*pr}')
    A('La_end:')
    A('s_endpgm')

def kd(name, vgpr, sgpr):
    A(f'''.amdhsa_kernel {name}
  .amdhsa_next_free_vgpr {vgpr}
  .amdhsa_next_free_sgpr {sgpr}
  .amdhsa_accum_offset {(vgpr+3)//4*4}
  .amdhsa_group_segment_fixed_size 0
  .amdhsa_kernarg_size 56
  .amdhsa_user_sgpr_count 2
  .amdhsa_user_sgpr_kernarg_segment_ptr 1
  .amdhsa_system_sgpr_workgroup_id_x 1
.end_amdhsa_kernel''')

A(HEADER.rstrip())
A('; @launch kernel=prep_kernel grid=(196,1,1) block=(512,1,1) lds=77824')
A(f'; @launch kernel=attn_kernel grid=({NWG},1,1) block=(768,1,1) lds=159744')
A('.amdgcn_target "amdgcn-amd-amdhsa--gfx950"\n.text')
gen_prep()
gen_attn()
A('.section .rodata,"a"\n.p2align 6')
kd('prep_kernel', 128, 48)
A('.p2align 6')
kd('attn_kernel', 168, 48)
out = sys.argv[1] if len(sys.argv) > 1 else 'standalone__window_attn_twins__vision.s'
open(out, 'w').write('\n'.join(L) + '\n')
```
